```python
import torch

def _softmax(x, axis=-1):
    return torch.softmax(x, dim=axis)
def _gelu(x):
    return torch.nn.functional.gelu(x, approximate="tanh")
def _silu(x):
    return torch.nn.functional.silu(x)
def _sigmoid(x):
    return torch.sigmoid(x)
def _layernorm(x, axis=-1, eps=1e-5):
    m = x.mean(dim=axis, keepdim=True)
    v = x.var(dim=axis, keepdim=True, unbiased=False)
    return (x - m) / torch.sqrt(v + eps)
def _scatter_add(tgt, idx, src, axis=0):
    return tgt.clone().index_add_(axis, idx, src)
def _segment_sum(src, seg, n):
    out = torch.zeros((n,) + src.shape[1:], dtype=src.dtype)
    return out.index_add_(0, seg, src)
def _pad(x, pw):
    flat = tuple(v for pair in reversed(pw) for v in pair)
    return torch.nn.functional.pad(x, flat)

kernel_name = 'concat_heads__mha_block_cached__mha_block_cached__near_ridge'

def setup_inputs():

    _w = (lambda a: (lambda t: t.to(torch.bfloat16) if t.is_floating_point() else t)(torch.as_tensor(a)))
    def _A_setup():
        B, Sq, D = 16, 64, 448
        H, Sk, Dh = 16, 64, 256
        return {
            "x": _w((lambda *s: torch.randn(*s, dtype=torch.bfloat16) * 0.8)(B, Sq, D)),
            "k_cache": _w((lambda *s: torch.randn(*s, dtype=torch.bfloat16) * 0.8)(B, H, Sk, Dh)),
            "v_cache": _w((lambda *s: torch.randn(*s, dtype=torch.bfloat16) * 0.05)(B, H, Sk, Dh)),
            "wq": _w((lambda *s: torch.randn(*s, dtype=torch.bfloat16) * 0.8)(D, H * Dh) * (D ** -0.5)),
            "wo": _w((lambda *s: torch.randn(*s, dtype=torch.bfloat16) * 0.05)(H * Dh, D) * ((H * Dh) ** -0.5)),
        }
    _A_in = _A_setup()

    def _B_setup():
        B, Sq, D = 16, 64, 448
        H, Sk, Dh = 16, 64, 256
        return {
            "x": _w((lambda *s: torch.randn(*s, dtype=torch.bfloat16) * 0.8)(B, Sq, D)),
            "k_cache": _w((lambda *s: torch.randn(*s, dtype=torch.bfloat16) * 0.8)(B, H, Sk, Dh)),
            "v_cache": _w((lambda *s: torch.randn(*s, dtype=torch.bfloat16) * 0.05)(B, H, Sk, Dh)),
            "wq": _w((lambda *s: torch.randn(*s, dtype=torch.bfloat16) * 0.8)(D, H * Dh) * (D ** -0.5)),
            "wo": _w((lambda *s: torch.randn(*s, dtype=torch.bfloat16) * 0.05)(H * Dh, D) * ((H * Dh) ** -0.5)),
        }
    _B_in = _B_setup()

    return {
        "A_x": _A_in["x"],
        "A_k_cache": _A_in["k_cache"],
        "A_v_cache": _A_in["v_cache"],
        "A_wq": _A_in["wq"],
        "A_wo": _A_in["wo"],
        "B_x": _B_in["x"],
        "B_k_cache": _B_in["k_cache"],
        "B_v_cache": _B_in["v_cache"],
        "B_wq": _B_in["wq"],
        "B_wo": _B_in["wo"],
    }

def reference(A_x, A_k_cache, A_v_cache, A_wq, A_wo, B_x, B_k_cache, B_v_cache, B_wq, B_wo):
    def _A_ref(x, k_cache, v_cache, wq, wo):
        B, Sq, D = x.shape
        H, Dh = 16, 256
        q = (lambda x, *d: x.permute(*d))((x @ wq).reshape(B, Sq, H, Dh), 0, 2, 1, 3)
        scores = torch.einsum("bhqd,bhkd->bhqk", q, k_cache) * (Dh ** -0.5)
        p = _softmax(scores, axis=-1)
        o = torch.einsum("bhqk,bhkd->bhqd", p, v_cache)
        return (lambda x, *d: x.permute(*d))(o, 0, 2, 1, 3).reshape(B, Sq, H * Dh) @ wo

    def _B_ref(x, k_cache, v_cache, wq, wo):
        B, Sq, D = x.shape
        H, Dh = 16, 256
        q = (lambda x, *d: x.permute(*d))((x @ wq).reshape(B, Sq, H, Dh), 0, 2, 1, 3)
        scores = torch.einsum("bhqd,bhkd->bhqk", q, k_cache) * (Dh ** -0.5)
        p = _softmax(scores, axis=-1)
        o = torch.einsum("bhqk,bhkd->bhqd", p, v_cache)
        return (lambda x, *d: x.permute(*d))(o, 0, 2, 1, 3).reshape(B, Sq, H * Dh) @ wo

    a = _A_ref(A_x, A_k_cache, A_v_cache, A_wq, A_wo)
    b = _B_ref(B_x, B_k_cache, B_v_cache, B_wq, B_wo)
    return torch.concatenate([a, b], axis=-1)
```

```python
import sys
OPT=dict(a.split('=') for a in sys.argv[2:])
LA=int(OPT.get('la',6))
STF=OPT.get('stf','sc1')
TIM=int(OPT.get('tim',0))
PRIO=int(OPT.get('prio',1))
U=16384
L=[]
def A(s): L.append(s)
def srd(d,b,n): A(f"s_mov_b32 s{d}, s{b}\ns_and_b32 s{d+1}, s{b+1}, 0xffff\ns_mov_b32 s{d+2}, {n}\ns_mov_b32 s{d+3}, 0x20000")
def vr(a,n): return f"v[{a}:{a+n-1}]"
hdr=open('concat_heads__mha_block_cached__mha_block_cached__near_ridge.s.ref').read().split('\n')
for h in hdr:
    if h.startswith('; @launch'): break
    A(h)
A("; @launch kernel=mha_main_kernel grid=(256,1,1) block=(512,1,1) lds=163840")
A("; @launch kernel=mha_reduce_kernel grid=(448,1,1) block=(256,1,1) lds=0")
A('.amdgcn_target "amdgcn-amd-amdhsa--gfx950"\n.text')
def khdr(k): A(f'.globl {k}\n.p2align 8\n.type {k},@function\n{k}:')
Wslot=lambda j: j%6
Xslot=lambda c: 6+c%4
Kslot={(0,0):9,(0,1):2,(1,0):3,(1,1):6}
Vslot={(0,0):4,(0,1):5,(1,0):7,(1,1):0}
Oseq=[1,8,9,2,3,6,4,5,7,0]
Oslot=lambda u: Oseq[u%10]
NBAR=14+2+7
khdr("mha_main_kernel")
A("""s_cmp_ge_u32 s2, 256
s_cbranch_scc1 L_main_end
s_and_b32 s3, s2, 7
s_lshr_b32 s4, s2, 3
s_lshr_b32 s5, s3, 2
s_mul_i32 s6, s5, 40
s_load_dwordx2 s[18:19], s[0:1], 96
s_load_dwordx2 s[60:61], s[0:1], 88
s_add_u32 s0, s0, s6
s_addc_u32 s1, s1, 0
s_load_dwordx8 s[8:15], s[0:1], 0
s_load_dwordx2 s[16:17], s[0:1], 32
s_and_b32 s6, s3, 3
s_lshl_b32 s6, s6, 2
s_and_b32 s7, s4, 3
s_add_u32 s6, s6, s7
s_lshr_b32 s7, s4, 2
v_lshrrev_b32 v1, 6, v0
v_and_b32 v0, 63, v0
s_nop 0
v_readfirstlane_b32 s44, v1
s_waitcnt lgkmcnt(0)""")
A("s_cmp_ge_u32 s44, 4\ns_cbranch_scc1 L_loader")
def stamp(i):
    if TIM: A(f"s_memtime s[{62+2*i}:{63+2*i}]")
if PRIO: A(f"s_setprio {PRIO}")
stamp(0)
srd(40,18,268435456)
ACC=0; FR=128; XB=160; SA=168; PB=200; OA=(168,200)
vW=232; vXb=236; vT=237; vK=238; vV=240; vO=248; vSt=250; vM=251; vM2=252; vL=253; vT2=254
A("s_lshr_b32 s45, s44, 1\ns_and_b32 s46, s44, 1")
A(f"""v_and_b32 v1, 3, v0
v_bfe_u32 v2, v0, 2, 2
v_bfe_u32 v3, v0, 4, 1
v_lshrrev_b32 v4, 5, v0
v_lshlrev_b32 v5, 1, v1
v_and_b32 v5, 2, v5
v_lshrrev_b32 v6, 1, v1
v_or_b32 v5, v5, v6
v_lshlrev_b32 v7, 5, v3
v_lshl_add_u32 v8, v5, 3, v7
v_lshl_add_u32 v9, v1, 3, v7""")
A("v_lshl_add_u32 v10, v4, 3, v2\nv_lshl_add_u32 v10, v10, 9, v8")
for t in range(4): A(f"v_xor_b32 v11, {t}, v2\nv_lshl_add_u32 v{vW+t}, v11, 6, v10")
A("v_lshl_add_u32 v10, v4, 2, v2\nv_lshl_add_u32 v12, v10, 9, v9")
A("s_cmp_eq_u32 s45, 0")
for r,sl,kt in ((47,Vslot,0),(48,Vslot,1),(49,Kslot,0),(50,Kslot,1)):
    A(f"s_cselect_b32 s{r}, {sl[(0,kt)]}, {sl[(1,kt)]}")
for r in (47,48,49,50): A(f"s_lshl_b32 s{r}, s{r}, 14")
for t in range(4):
    A(f"v_xor_b32 v11, {t}, v2\nv_lshl_add_u32 v11, v11, 6, v12\nv_add_u32 v{vV+t}, s47, v11\nv_add_u32 v{vV+4+t}, s48, v11")
A(f"v_lshl_add_u32 v10, v10, 7, v8\nv_lshrrev_b32 v11, 1, v2")
A(f"v_lshl_add_u32 v{vO}, v11, 6, v10\nv_xor_b32 v11, 1, v11\nv_lshl_add_u32 v{vO+1}, v11, 6, v10")
A(f"v_add_u32 v{vO}, {Oslot(0)*U}, v{vO}\nv_add_u32 v{vO+1}, {Oslot(0)*U}, v{vO+1}")
A(f"""v_and_b32 v10, 31, v0
s_lshl_b32 s51, s44, 5
v_add_u32 v11, s51, v10
v_bfe_u32 v12, v11, 1, 3
v_xor_b32 v12, v12, v4
v_lshlrev_b32 v12, 4, v12
v_lshl_add_u32 v12, v11, 7, v12
v_add_u32 v{vXb}, {Xslot(0)*U}, v12
v_and_b32 v11, 15, v0
v_xor_b32 v11, v11, v4
v_lshlrev_b32 v11, 4, v11
v_lshl_add_u32 v11, v10, 9, v11
v_add_u32 v{vK}, s49, v11
v_add_u32 v{vK+1}, s50, v11
s_lshl_b32 s51, s44, 12
v_lshl_add_u32 v{vSt}, v0, 4, s51
s_lshl_b32 s52, s5, 3
s_add_u32 s52, s52, s7
s_lshl_b32 s52, s52, 4
s_add_u32 s52, s52, s6
s_mul_i32 s52, s52, 114688
s_mov_b32 s54, 0x3db8aa3b""")
ops=[]
def op(reads,mf,bar=None,pre=None): ops.append(dict(reads=reads,mf=mf,bar=bar,pre=pre or [],post=[],before=[])); return ops[-1]
def cvt_tile(base,n=8): return [f"v_cvt_pk_bf16_f32 v{base+i}, v{base+2*i}, v{base+2*i+1}" for i in range(n)]
def mfma(D,Ar,B,first): return f"v_mfma_f32_32x32x16_bf16 {vr(D,16)}, {vr(Ar,4)}, {vr(B,4)}, {'0' if first else vr(D,16)}"
for j in range(14):
    for s in range(2):
        ks=2*j+s; xb=XB+4*(ks%2)
        for T in range(8):
            pre=[];rd=[]
            if T==0:
                if s==0 and j>0:
                    d=(Wslot(j)-Wslot(j-1))*U
                    pre+=[f"v_add_u32 v{vW+t}, {d&0xffffffff:#x}, v{vW+t}" for t in range(4)]
                    if j%2==0: pre.append(f"v_add_u32 v{vXb}, {((Xslot(j//2)-Xslot(j//2-1))*U)&0xffffffff:#x}, v{vXb}")
                sp=ks%4
                if sp: pre.append(f"v_xor_b32 v{vT}, {32*sp}, v{vXb}"); rd.append(f"ds_read_b128 {vr(xb,4)}, v{vT}")
                else: rd.append(f"ds_read_b128 {vr(xb,4)}, v{vXb}")
            for jj in range(2):
                rd.append("ds_read_b64_tr_b16 v[{f%d}:{f%d}], v%d offset:%d"%(2*jj,2*jj+1,vW+(T&3),(T>>2)*256+(16*s+4*jj)*512))
            op(rd,(lambda a,T=T,xb=xb,ks=ks: mfma(ACC+16*T,a,xb,ks==0)),bar=j if (s==0 and T==0) else None,pre=pre)
n1=len(ops)
ops[n1-2]['post']+=cvt_tile(ACC,4); ops[n1-1]['post']+=cvt_tile(ACC)[4:]
for s in range(16):
    for kt in range(2):
        pre=[]
        if s&7: pre.append(f"v_xor_b32 v{vT+0 if kt==0 else vT2}, {32*(s&7)}, v{vK+kt}"); av=vT if kt==0 else vT2
        else: av=vK+kt
        o=op(["ds_read_b128 v[{f0}:{f3}], v%d offset:%d"%(av,(s>>3)*256)],(lambda a,s=s,kt=kt: mfma(SA+16*kt,a,ACC+16*(s>>1)+4*(s&1),s==0)),bar=14 if (s==0 and kt==0) else None,pre=pre)
        T=(s>>1)+1
        if T<8:
            q=2*(s&1)+kt; o['post']+=cvt_tile(ACC+16*T)[2*q:2*q+2]
        if T==7 and s==12 and kt==0: pass
n2=len(ops)
sm=[]
sm.append(f"v_max3_f32 v{vM}, v{SA}, v{SA+1}, v{SA+2}")
sm.append(f"v_max3_f32 v{vM2}, v{SA+3}, v{SA+4}, v{SA+5}")
for i in range(6,30,4):
    sm.append(f"v_max3_f32 v{vM}, v{vM}, v{SA+i}, v{SA+i+1}"); sm.append(f"v_max3_f32 v{vM2}, v{vM2}, v{SA+i+2}, v{SA+i+3}")
sm.append(f"v_max3_f32 v{vM}, v{vM}, v{SA+30}, v{SA+31}")
sm+= [f"v_max_f32 v{vM}, v{vM}, v{vM2}", f"v_mov_b32 v{vM2}, v{vM}", "s_nop 1", f"v_permlane32_swap_b32 v{vM2}, v{vM}", "s_nop 0", f"v_max_f32 v{vM}, v{vM}, v{vM2}", f"v_mul_f32 v{vM}, s54, v{vM}"]
for i in range(32): sm.append(f"v_fma_f32 v{SA+i}, v{SA+i}, s54, -v{vM}")
for i in range(32):
    sm.append(f"v_exp_f32 v{SA+i}, v{SA+i}")
    if i==2: sm.append(f"v_add_f32 v{vL}, v{SA}, v{SA+1}")
    elif i==4: sm.append(f"v_add_f32 v{vM2}, v{SA+2}, v{SA+3}")
    elif i>4: sm.append(f"v_add_f32 v{vL if i%2 else vM2}, v{vL if i%2 else vM2}, v{SA+i-1}")
sm+= ["s_nop 0", f"v_add_f32 v{vM2}, v{vM2}, v{SA+31}", f"v_add_f32 v{vL}, v{vL}, v{vM2}", f"v_mov_b32 v{vM2}, v{vL}", "s_nop 1", f"v_permlane32_swap_b32 v{vM2}, v{vL}", "s_nop 0", f"v_add_f32 v{vL}, v{vL}, v{vM2}", f"v_rcp_f32 v{vL}, v{vL}", "s_nop 0"]
for i in range(16):
    sm+= [f"v_mul_f32 v{SA+2*i}, v{SA+2*i}, v{vL}", f"v_mul_f32 v{SA+2*i+1}, v{SA+2*i+1}, v{vL}", f"v_cvt_pk_bf16_f32 v{PB+i}, v{SA+2*i}, v{SA+2*i+1}"]
for T in range(8):
    for s in range(4):
        kt=s>>1
        rd=["ds_read_b64_tr_b16 v[{f%d}:{f%d}], v%d offset:%d"%(2*jj,2*jj+1,vV+4*kt+(T&3),(T>>2)*256+(16*(s&1)+8*jj)*512) for jj in range(2)]
        o=op(rd,(lambda a,T=T,s=s: mfma(ACC+16*T,a,PB+4*s,s==0)),bar=15 if (T==0 and s==0) else None)
        if T==0 and s==0: o['before']=sm; o['hold']=1
        if T>=2: o['post']+=cvt_tile(ACC+16*(T-2))[2*s:2*s+2]
n3=len(ops)
def storelist(c):
    r=[]
    for t in range(2):
        base=OA[c%2]+16*t; cv=cvt_tile(base)
        r+=cv[:4]+[f"s_add_u32 s53, s52, {c*16384}" if t==0 else None, f"buffer_store_dwordx4 {vr(base,4)}, v{vSt}, s[40:43], s53 offen offset:{(2*t)*1024} {STF}"]
        r+=cv[4:]+[f"buffer_store_dwordx4 {vr(base+4,4)}, v{vSt}, s[40:43], s53 offen offset:{(2*t+1)*1024} {STF}"]
    return [x for x in r if x]
for c in range(7):
    for half in range(2):
        u=2*c+half
        for s in range(8):
            for t in range(2):
                pre=[]
                if s==0 and t==0 and u>0:
                    d=(Oslot(u)-Oslot(u-1))*U
                    pre=[f"v_add_u32 v{vO+i}, {d&0xffffffff:#x}, v{vO+i}" for i in range(2)]
                rd=["ds_read_b64_tr_b16 v[{f%d}:{f%d}], v%d offset:%d"%(2*jj,2*jj+1,vO+t,(16*s+8*jj)*128) for jj in range(2)]
                Sg=8*half+s
                op(rd,(lambda a,c=c,t=t,Sg=Sg: mfma(OA[c%2]+16*t,a,ACC+16*(Sg>>1)+4*(Sg&1),Sg==0)),bar=16+c if (half==0 and s==0 and t==0) else None,pre=pre)
for i,x in enumerate(cvt_tile(ACC+16*6)+cvt_tile(ACC+16*7)): ops[n3+3+i//2]['post'].append(x)
for c in range(6):
    for i,x in enumerate(storelist(c)): ops[n3+32*(c+1)+5+i]['post'].append(x)
nread=0; lastread={}
def emit_reads(i):
    global nread
    o=ops[i]
    if o['bar'] is not None:
        A(f"s_barrier ; b{o['bar']}")
        if o['bar'] in (0,14,15,16): stamp({0:1,14:2,15:3,16:4}[o['bar']])
    for p in o['pre']: A(p)
    f=FR+4*(i%8)
    for r in o['reads']:
        A(r.format(f0=f,f1=f+1,f2=f+2,f3=f+3)); nread+=1
    lastread[i]=nread
rp=0
for i,o in enumerate(ops):
    while rp<len(ops) and rp<=i+LA and not (ops[rp].get('hold') and rp>i): emit_reads(rp); rp+=1
    for x in o['before']: A(x)
    w=nread-lastread[i]; assert w<=15
    A(f"s_waitcnt lgkmcnt({w})")
    A(o['mf'](FR+4*(i%8)))
    for x in o['post']: A(x)
stamp(5)
for x in storelist(6): A(x)
if TIM:
    A("s_waitcnt vmcnt(0)"); stamp(6)
    A("s_memrealtime s[76:77]\ns_waitcnt lgkmcnt(0)\ns_cmp_lg_u32 s44, 0\ns_cbranch_scc1 L_main_end")
    for i in range(8): A(f"v_writelane_b32 v0, s{62+2*i}, {i}")
    A("v_mbcnt_lo_u32_b32 v1, -1, 0\nv_lshlrev_b32 v1, 2, v1\ns_lshl_b32 s53, s2, 5\ns_add_u32 s53, s53, 0x4000000\ns_mov_b64 exec, 0xff\nbuffer_store_dword v0, v1, s[40:43], s53 offen")
A("s_endpgm")
A("L_loader:")
srd(20,8,917504);srd(24,10,8388608);srd(28,12,8388608);srd(32,14,3670016);srd(36,16,3670016)
A("s_sub_u32 s44, s44, 4\ns_lshl_b32 s45, s44, 10")
A(f"""v_lshrrev_b32 v1, 3, v0
v_and_b32 v2, 7, v0
v_lshrrev_b32 v3, 4, v0
s_and_b32 s46, s44, 1
s_lshl_b32 s47, s46, 2
v_add_u32 v4, s47, v3
v_and_b32 v4, 7, v4
v_xor_b32 v4, v4, v2
s_lshl_b32 s47, s44, 3
v_add_u32 v1, s47, v1
v_mul_u32_u24 v1, 896, v1
v_lshl_add_u32 v10, v4, 4, v1
v_and_b32 v4, 1, v3
v_lshlrev_b32 v4, 2, v4
v_xor_b32 v4, v4, v2
v_lshl_add_u32 v12, v4, 4, v1
v_lshrrev_b32 v1, 5, v0
v_and_b32 v2, 31, v0
s_lshl_b32 s47, s44, 1
v_add_u32 v1, s47, v1
v_and_b32 v3, 3, v1
v_lshlrev_b32 v3, 2, v3
v_xor_b32 v3, v3, v2
v_lshlrev_b32 v3, 4, v3
v_lshl_add_u32 v11, v1, 13, v3
v_lshl_add_u32 v15, v1, 9, v3
v_xor_b32 v3, v1, v2
v_lshlrev_b32 v3, 4, v3
v_lshl_add_u32 v14, v1, 9, v3
v_lshl_add_u32 v13, v0, 4, s45
s_mul_i32 s48, s7, 114688
s_lshl_b32 s49, s6, 9
s_lshl_b32 s50, s7, 5
s_add_u32 s50, s50, s6
s_lshl_b32 s50, s50, 15
s_mul_i32 s51, s6, 229376""")
KR=16; VR=80
issued=[]
def dma(tag,v,sr,base,off,slot,i):
    A(f"s_add_u32 s52, s{base}, {off}\ns_add_u32 m0, s45, {slot*U+i*4096}\ns_nop 0\nbuffer_load_dwordx4 v{v}, s[{sr}:{sr+3}], s52 offen lds"); issued.append(tag)
def ldX(c):
    for i in range(4): dma(('X',c),10,20,48,i*32*896+c*128,Xslot(c),i)
def ldW(j):
    for i in range(4): dma(('W',j),11,32,49,(32*j+8*i)*8192,Wslot(j),i)
def ldO(u):
    for i in range(4): dma(('O',u),12,36,51,(128*(u&1)+32*i)*896+(u>>1)*128,Oslot(u),i)
kvq=[(t,b,kt,i) for t in 'KV' for b in range(2) for kt in range(2) for i in range(4)]
def ldKV(n):
    for _ in range(n):
        t,b,kt,i=kvq.pop(0); r=(KR if t=='K' else VR)+16*(2*b+kt)+4*i; sr=24 if t=='K' else 28
        A(f"s_add_u32 s52, s50, {b*524288+kt*16384+i*4096}\nbuffer_load_dwordx4 {vr(r,4)}, v13, s[{sr}:{sr+3}], s52 offen"); issued.append((t,b,kt))
def waitfor(tags):
    idx=max(i for i,t in enumerate(issued) if t in tags); n=len(issued)-1-idx
    A(f"s_waitcnt vmcnt({min(n,63)})")
def wrKV(t,b,kt):
    waitfor([(t,b,kt)])
    slot=(Kslot if t=='K' else Vslot)[(b,kt)]; r=(KR if t=='K' else VR)+16*(2*b+kt)
    if t=='K': A(f"v_add_u32 v1, {slot*U}, v14\nv_xor_b32 v2, 128, v1")
    else: A(f"v_add_u32 v1, {slot*U}, v15\nv_mov_b32 v2, v1")
    for i in range(4): A(f"ds_write_b128 v{1+(i&1)}, {vr(r+4*i,4)} offset:{i*4096}")
ldX(0);ldW(0);ldW(1);ldX(1);ldKV(2);ldW(2);ldKV(2);ldW(3);ldKV(2);ldX(2);ldW(4);ldW(5);ldX(3)
for j in range(NBAR):
    need=[]
    if j<14: need=[('W',j),('X',j//2)]
    elif j>=16: need=[('O',2*(j-16)),('O',2*(j-16)+1)]
    if need: waitfor(need)
    if j in (13,14,15): A("s_waitcnt lgkmcnt(0)")
    A(f"s_barrier ; b{j}")
    if j>=1 and j<14:
        if j-2+6<14 and j>=2: ldW(j+4)
        if j>=3 and j%2==1 and (j-3)//2+4<7: ldX((j-3)//2+4)
    if j<9: ldKV(3 if j<8 else 2)
    if j==9: wrKV('K',0,0)
    if j==10: wrKV('K',0,1)
    if j==11: wrKV('K',1,0); wrKV('K',1,1)
    if j==12: wrKV('V',0,0)
    if j==13: wrKV('V',0,1); wrKV('V',1,0)
    if j==14: wrKV('V',1,1)
    if j==15:
        for u in range(6): ldO(u)
    if j==17:
        for u in range(6,10): ldO(u)
    if j==18: ldO(10); ldO(11)
    if j==19: ldO(12); ldO(13)
assert not kvq
A("L_main_end:\ns_endpgm")
khdr("mha_reduce_kernel")
A(f"""s_cmp_ge_u32 s2, 448
s_cbranch_scc1 L_red_end
s_load_dwordx2 s[18:19], s[0:1], 96
s_load_dwordx2 s[16:17], s[0:1], 80
s_mov_b32 s4, {(2**32+27)//28}
s_mul_hi_u32 s5, s2, s4
s_mul_i32 s6, s5, 28
s_sub_u32 s6, s2, s6
s_mul_i32 s7, s5, {16*114688}
s_lshl_b32 s8, s6, 12
s_add_u32 s7, s7, s8
v_lshlrev_b32 v1, 4, v0
s_waitcnt lgkmcnt(0)""")
srd(40,18,268435456); srd(36,16,1835008)
for h in range(16): A(f"s_add_u32 s9, s7, {h*114688}\nbuffer_load_dwordx4 {vr(8+4*h,4)}, v1, s[40:43], s9 offen")
A("""s_lshr_b32 s10, s5, 3
s_and_b32 s11, s5, 7
s_lshr_b32 s12, s6, 2
s_and_b32 s13, s6, 3
s_lshl_b32 s11, s11, 7
s_lshl_b32 s13, s13, 5
s_add_u32 s11, s11, s13
s_mul_i32 s11, s11, 1792
s_mul_i32 s10, s10, 896
s_add_u32 s11, s11, s10
s_lshl_b32 s12, s12, 7
s_add_u32 s11, s11, s12
v_and_b32 v2, 31, v0
v_mul_u32_u24 v2, 1792, v2
v_lshrrev_b32 v3, 5, v0
v_lshl_add_u32 v2, v3, 4, v2""")
for h in range(16):
    A(f"s_waitcnt vmcnt({15-h})")
    for d in range(4):
        r=8+4*h+d
        if h==0: A(f"v_lshlrev_b32 v{72+2*d}, 16, v{r}\nv_and_b32 v{73+2*d}, 0xffff0000, v{r}")
        else: A(f"v_lshlrev_b32 v4, 16, v{r}\nv_and_b32 v5, 0xffff0000, v{r}\nv_add_f32 v{72+2*d}, v{72+2*d}, v4\nv_add_f32 v{73+2*d}, v{73+2*d}, v5")
for d in range(4): A(f"v_cvt_pk_bf16_f32 v{8+d}, v{72+2*d}, v{73+2*d}")
A("buffer_store_dwordx4 v[8:11], v2, s[36:39], s11 offen\nL_red_end:\ns_endpgm")
A('.section .rodata,"a"')
for k,nv in (("mha_main_kernel",256),("mha_reduce_kernel",80)):
    A(f".p2align 6\n.amdhsa_kernel {k}\n  .amdhsa_next_free_vgpr {nv}\n  .amdhsa_next_free_sgpr 96\n  .amdhsa_accum_offset {nv}\n  .amdhsa_group_segment_fixed_size 0\n  .amdhsa_kernarg_size 104\n  .amdhsa_user_sgpr_count 2\n  .amdhsa_user_sgpr_kernarg_segment_ptr 1\n  .amdhsa_system_sgpr_workgroup_id_x 1\n.end_amdhsa_kernel")
import re
def regs(tok):
    tok=tok.strip().lstrip('-')
    m=re.match(r'v\[(\d+):(\d+)\]$',tok)
    if m: return set(range(int(m.group(1)),int(m.group(2))+1))
    m=re.match(r'v(\d+)$',tok)
    return {int(m.group(1))} if m else set()
def hazard(lines):
    out=[];hist=[]
    pos=0;ins=0
    for ln in lines:
        t=ln.split(';')[0].strip()
        if not t or t.endswith(':') or t.startswith('.'): out.append(ln); continue
        opc=t.split()[0]; args=[a for a in t[len(opc):].replace(' offen','').split(',')]
        args=[a.split()[0] if a.split() else '' for a in args]
        R=[regs(a) for a in args]
        if opc.startswith('v_mfma'): kind='mfma'; w=R[0]; rd=R[1]|R[2]|R[3]
        elif opc.startswith('v_permlane'): kind='perm'; w=R[0]|R[1]; rd=w
        elif opc.startswith('v_readfirstlane') or opc.startswith('v_readlane'): kind='rl'; w=set(); rd=R[1]
        elif opc.startswith('v_'):
            kind='trans' if opc.split('_')[1] in('exp','rcp','log','rsq','sqrt') else 'valu'; w=R[0]; rd=set().union(*R[1:]) if len(R)>1 else set()
        elif opc.startswith('ds_read'): kind='dsr'; w=R[0]; rd=R[1]
        elif opc.startswith('ds_write'): kind='mem'; w=set(); rd=R[0]|R[1]
        elif opc.startswith('buffer_store'): kind='st'; w=set(); rd=R[0]|R[1]
        elif opc.startswith('buffer_load'): kind='mem'; w=set() if t.endswith('lds') else R[0]; rd=R[0] if t.endswith('lds') else R[1]
        else: kind='s'; w=set(); rd=set()
        need=0
        for (k,hw,hr,p) in hist[-24:]:
            d=pos-p-1; req=0
            if k in('valu','trans','perm') and kind=='mfma' and hw&rd: req=2
            if k in('valu','trans') and kind=='perm' and hw&rd: req=2
            if k in('valu','trans','perm') and kind=='rl' and hw&rd: req=1
            if k=='trans' and kind in('valu','perm','st','mem') and hw&rd: req=max(req,1)
            if k=='mfma' and kind!='mfma' and kind!='s' and hw&(rd|w): req=12
            if k=='mfma' and kind=='mfma' and hw&(R[1]|R[2]): req=12
            if k=='mfma' and kind=='mfma' and hw&w and hw!=w: req=10
            if k=='st' and kind in('valu','trans','perm','mfma') and hr&w: req=2
            need=max(need,req-d)
        while need>0:
            n=min(need,16); out.append(f"s_nop {n-1} ; hz"); pos+=n; need-=n; ins+=1
        out.append(ln); hist.append((kind,w,rd,pos)); pos+= (int(args[0])+1 if opc=='s_nop' else 1)
    print("hazard nops inserted:",ins,file=sys.stderr)
    return out
L=hazard("\n".join(L).split("\n"))
open(sys.argv[1],'w').write("\n".join(L)+"\n")
```
